```python
import torch

def _softmax(x, axis=-1):
    return torch.softmax(x, dim=axis)
def _gelu(x):
    return torch.nn.functional.gelu(x, approximate="tanh")
def _silu(x):
    return torch.nn.functional.silu(x)
def _sigmoid(x):
    return torch.sigmoid(x)
def _layernorm(x, axis=-1, eps=1e-5):
    m = x.mean(dim=axis, keepdim=True)
    v = x.var(dim=axis, keepdim=True, unbiased=False)
    return (x - m) / torch.sqrt(v + eps)
def _scatter_add(tgt, idx, src, axis=0):
    return tgt.clone().index_add_(axis, idx, src)
def _segment_sum(src, seg, n):
    out = torch.zeros((n,) + src.shape[1:], dtype=src.dtype)
    return out.index_add_(0, seg, src)
def _pad(x, pw):
    flat = tuple(v for pair in reversed(pw) for v in pair)
    return torch.nn.functional.pad(x, flat)

kernel_name = 'standalone__sliding_local_strided__prompt'

def setup_inputs():

    _w = (lambda a: (lambda t: t.to(torch.bfloat16) if t.is_floating_point() else t)(torch.as_tensor(a)))
    B, H, S, D = 1, 16, 2048, 256
    return {
        "q": _w((lambda *s: torch.randn(*s, dtype=torch.bfloat16) * 0.8)(B, H, S, D)),
        "k": _w((lambda *s: torch.randn(*s, dtype=torch.bfloat16) * 0.8)(B, H, S, D)),
        "v": _w((lambda *s: torch.randn(*s, dtype=torch.bfloat16) * 0.05)(B, H, S, D)),
    }

def reference(q, k, v):
    B, H, S, D = q.shape
    W, dil = 8, 4
    scale = D ** -0.5
    pos = torch.arange(S)
    kidx = pos[:, None] - torch.arange(W)[None, :] * dil
    valid = kidx >= 0
    kidx = torch.where(valid, kidx, torch.zeros_like(kidx))
    idx = torch.reshape(kidx, (1, 1, S * W, 1))
    idx = (lambda x, n, axis: torch.repeat_interleave(x, n, dim=axis))(idx, B, 0)
    idx = (lambda x, n, axis: torch.repeat_interleave(x, n, dim=axis))(idx, H, 1)
    idx = (lambda x, n, axis: torch.repeat_interleave(x, n, dim=axis))(idx, D, 3)
    kg = torch.reshape((lambda x, i, axis: torch.take_along_dim(x, i, dim=axis))(k, idx, 2), (B, H, S, W, D))
    vg = torch.reshape((lambda x, i, axis: torch.take_along_dim(x, i, dim=axis))(v, idx, 2), (B, H, S, W, D))
    scores = torch.einsum("bhsd,bhswd->bhsw", q, kg) * scale
    mask_f = (lambda x, dt: x.to(dt))(valid, q.dtype)[None, None, :, :]
    scores = scores + (mask_f - 1.0) * 1e9
    p = _softmax(scores, axis=-1)
    return torch.einsum("bhsw,bhswd->bhsd", p, vg)
```

```python
NAME = "standalone__sliding_local_strided__prompt"

HEADER = """; Kernarg layout for this problem (48 bytes, ptrs only, base s[0:1]):
"""

class Asm:
    def __init__(self):
        self.lines = []
    def __call__(self, s=""):
        for l in s.split("\n"):
            l = l.strip()
            if not l:
                continue
            if l.endswith(":"):
                self.lines.append(l)
            else:
                self.lines.append("    " + l)
    def c(self, s):
        self.lines.append("    ; " + s)
    def text(self):
        return "\n".join(self.lines) + "\n"

def wrap(body, grid, block, lds, vgpr, sgpr, extra_comment="", accum=None):
    if accum is None:
        accum = (vgpr + 3) // 4 * 4
    s = HEADER
    for l in extra_comment.strip().split("\n"):
        if l.strip():
            s += "; " + l.strip() + "\n"
    s += f"; @launch grid=({grid},1,1) block=({block},1,1) lds={lds}\n"
    s += f""".amdgcn_target "amdgcn-amd-amdhsa--gfx950"
.text
.globl {NAME}_kernel
.p2align 8
.type {NAME}_kernel,@function
{NAME}_kernel:
"""
    s += body
    s += f""".section .rodata,"a"
.p2align 6
.amdhsa_kernel {NAME}_kernel
  .amdhsa_next_free_vgpr {vgpr}
  .amdhsa_next_free_sgpr {sgpr}
  .amdhsa_accum_offset {accum}
  .amdhsa_group_segment_fixed_size 0
  .amdhsa_kernarg_size 48
  .amdhsa_user_sgpr_count 2
  .amdhsa_user_sgpr_kernarg_segment_ptr 1
  .amdhsa_system_sgpr_workgroup_id_x 1
.end_amdhsa_kernel
"""
    return s

def lanemask(f):
    m = 0
    for l in range(64):
        if f(l):
            m |= 1 << l
    return m
```

```python
import sys
from common import *

def gen(ldq="", ldk="", ldv="", st="", swz=True):
    a = Asm()
    NB = 16777216
    a("s_cmp_ge_u32 s2, 512")
    a("s_cbranch_scc1 L_end")
    a("s_load_dwordx4 s[20:23], s[0:1], 0")
    a("s_load_dwordx4 s[24:27], s[0:1], 16")
    if swz:
        a("s_and_b32 s28, s2, 7")
        a("s_lshr_b32 s29, s2, 3")
        a("s_lshl_b32 s28, s28, 6")
        a("s_or_b32 s28, s28, s29")
    else:
        a("s_mov_b32 s28, s2")
    a("s_and_b32 s29, s28, 31")
    a("s_lshl_b32 s30, s28, 15")
    a("v_lshrrev_b32 v1, 6, v0")
    a("v_and_b32 v2, 63, v0")
    a("v_readfirstlane_b32 s31, v1")
    a("v_and_b32 v3, 15, v2")
    a("v_lshrrev_b32 v4, 4, v2")
    a("v_lshlrev_b32 v5, 11, v3")
    a("v_lshl_add_u32 v5, v4, 4, v5")
    a("s_lshl_b32 s33, s31, 9")
    a("s_add_u32 s30, s30, s33")
    a("v_add_u32 v5, s30, v5")
    a("v_and_b32 v6, 7, v3")
    a("v_max_u32 v6, 1, v6")
    a("v_lshlrev_b32 v6, 11, v6")
    a("v_lshl_add_u32 v6, v4, 4, v6")
    a("s_sub_u32 s34, s30, 16384")
    a("s_cmp_eq_u32 s29, 0")
    a("s_cselect_b32 s34, 0x80000000, s34")
    a("v_add_u32 v6, s34, v6")
    a("s_waitcnt lgkmcnt(0)")
    for (d, s) in ((4, 20), (8, 22), (12, 24), (16, 26)):
        a(f"s_mov_b32 s{d}, s{s}")
        a(f"s_and_b32 s{d+1}, s{s+1}, 0xffff")
        a(f"s_mov_b32 s{d+2}, {NB}")
        a(f"s_mov_b32 s{d+3}, 0x20000")
    Q, KA, KB = 32, 64, 96
    for t in range(8):
        a(f"buffer_load_dwordx4 v[{Q+4*t}:{Q+4*t+3}], v5, s[4:7], 0 offen offset:{64*t} {ldq}")
        a(f"buffer_load_dwordx4 v[{KB+4*t}:{KB+4*t+3}], v5, s[8:11], 0 offen offset:{64*t} {ldk}")
        a(f"buffer_load_dwordx4 v[{KA+4*t}:{KA+4*t+3}], v6, s[8:11], 0 offen offset:{64*t} {ldk}")
    a("v_lshrrev_b32 v7, 5, v2")
    a("v_and_b32 v8, 31, v2")
    a("v_lshlrev_b32 v9, 2, v7")
    a("v_xor_b32 v8, v8, v9")
    a("v_lshlrev_b32 v8, 4, v8")
    a("v_lshl_add_u32 v10, v7, 11, v8")
    a("v_xor_b32 v11, 0x80, v10")
    a("v_add_u32 v11, 3072, v11")
    a("v_add_u32 v12, 6144, v10")
    a("v_add_u32 v13, 6144, v11")
    a("v_or_b32 v14, 2048, v8")
    a("v_add_u32 v14, s34, v14")
    for n in range(1, 4):
        a(f"v_add_u32 v{14+n}, s34, v{10+n}")
    a("s_mul_i32 s35, s31, 12288")
    a("s_mov_b32 m0, s35")
    a("s_add_u32 s36, s30, 16384")
    for n in range(4):
        a(f"buffer_load_dwordx4 v{14+n}, s[12:15], 0 offen offset:{1024*n} {ldv} lds")
    a("s_add_u32 m0, s35, 4096")
    a("s_nop 0")
    for n in range(4):
        a(f"buffer_load_dwordx4 v{10+n}, s[12:15], s30 offen offset:{1024*n} {ldv} lds")
    a("s_add_u32 m0, s35, 8192")
    a("s_nop 0")
    for n in range(4):
        a(f"buffer_load_dwordx4 v{10+n}, s[12:15], s36 offen offset:{1024*n} {ldv} lds")
    def kk(l, r): return 4*(l >> 4) + r
    for r in range(4):
        mle = lanemask(lambda l: kk(l, r) <= (l & 15))
        mvb = lanemask(lambda l: (l & 15) - 7 <= kk(l, r) <= (l & 15))
        mva = lanemask(lambda l: kk(l, r) >= (l & 15) + 9)
        a(f"s_mov_b32 s{40+2*r}, {mle & 0xffffffff:#x}")
        a(f"s_mov_b32 s{41+2*r}, {mle >> 32:#x}")
        assert mva & 0xffffffff == 0
        a(f"s_mov_b32 s{48+2*r}, {mvb & 0xffffffff:#x}")
        a("s_cmp_eq_u32 s29, 0")
        a(f"s_mov_b32 s{49+2*r}, {mvb >> 32:#x}")
        a(f"s_cselect_b32 s37, 0, {mva >> 32:#x}")
        a(f"s_or_b32 s{49+2*r}, s{49+2*r}, s37")
    a("v_mov_b32 v16, 0xffff")
    a("v_mov_b32 v17, 0xffff0000")
    a("v_cndmask_b32 v18, 0, v16, s[40:41]")
    a("v_cndmask_b32 v19, 0, v17, s[42:43]")
    a("v_or_b32 v18, v18, v19")
    a("v_cndmask_b32 v19, 0, v16, s[44:45]")
    a("v_cndmask_b32 v20, 0, v17, s[46:47]")
    a("v_or_b32 v19, v19, v20")
    a("v_mov_b32 v20, 0xff800000")
    a("v_lshrrev_b32 v7, 2, v3")
    a("v_and_b32 v8, 3, v3")
    a("v_lshlrev_b32 v9, 6, v7")
    a("v_lshl_add_u32 v9, v8, 4, v9")
    a("v_lshl_add_u32 v9, v7, 9, v9")
    a("v_add_u32 v9, s35, v9")
    a("v_and_b32 v7, 1, v4")
    a("v_lshl_add_u32 v21, v7, 11, v9")
    a("v_lshl_add_u32 v25, v4, 11, v9")
    for u in range(1, 4):
        a(f"v_xor_b32 v{21+u}, {64*u}, v21")
        a(f"v_xor_b32 v{25+u}, {64*u}, v25")
    a("s_mov_b32 s38, 0x3db8aa3b")
    for t in range(8):
        a(f"s_waitcnt vmcnt({12 + 3*(7-t)})")
        c = "0" if t == 0 else "v[8:11]"
        a(f"v_mfma_f32_16x16x32_bf16 v[8:11], v[{KB+4*t}:{KB+4*t+3}], v[{Q+4*t}:{Q+4*t+3}], {c}")
        c = "0" if t == 0 else "v[12:15]"
        a(f"v_mfma_f32_16x16x32_bf16 v[12:15], v[{KA+4*t}:{KA+4*t+3}], v[{Q+4*t}:{Q+4*t+3}], {c}")
    a("s_nop 7")
    for r in range(4):
        a(f"v_cndmask_b32 v{8+r}, v{12+r}, v{8+r}, s[{40+2*r}:{41+2*r}]")
    a("v_cvt_pk_bf16_f32 v12, v8, v9")
    a("v_cvt_pk_bf16_f32 v13, v10, v11")
    a("v_lshlrev_b32 v8, 16, v12")
    a("v_and_b32 v9, 0xffff0000, v12")
    a("v_lshlrev_b32 v10, 16, v13")
    a("v_and_b32 v11, 0xffff0000, v13")
    for r in range(4):
        a(f"v_cndmask_b32 v{8+r}, v20, v{8+r}, s[{48+2*r}:{49+2*r}]")
    a("v_max3_f32 v12, v8, v9, v10")
    a("v_max_f32 v12, v12, v11")
    a("v_mov_b32 v13, v12")
    a("s_nop 1")
    a("v_permlane32_swap_b32 v12, v13")
    a("v_max_f32 v12, v12, v13")
    a("v_mov_b32 v13, v12")
    a("s_nop 1")
    a("v_permlane16_swap_b32 v12, v13")
    a("v_max_f32 v12, v12, v13")
    for r in range(4):
        a(f"v_sub_f32 v{8+r}, v{8+r}, v12")
    for r in range(4):
        a(f"v_mul_f32 v{8+r}, s38, v{8+r}")
    for r in range(4):
        a(f"v_exp_f32 v{8+r}, v{8+r}")
    a("v_add_f32 v12, v8, v9")
    a("v_add_f32 v13, v10, v11")
    a("v_add_f32 v12, v12, v13")
    a("v_mov_b32 v13, v12")
    a("s_nop 1")
    a("v_permlane32_swap_b32 v12, v13")
    a("v_add_f32 v12, v12, v13")
    a("v_mov_b32 v13, v12")
    a("s_nop 1")
    a("v_permlane16_swap_b32 v12, v13")
    a("v_add_f32 v12, v12, v13")
    a("v_rcp_f32 v12, v12")
    a("s_nop 0")
    for r in range(4):
        a(f"v_mul_f32 v{8+r}, v{8+r}, v12")
    a("v_cvt_pk_bf16_f32 v12, v8, v9")
    a("v_cvt_pk_bf16_f32 v13, v10, v11")
    a("v_and_b32 v10, v12, v18")
    a("v_and_b32 v11, v13, v19")
    a("v_xor_b32 v8, v12, v10")
    a("v_xor_b32 v9, v13, v11")
    a("s_waitcnt vmcnt(0)")
    VF = 64
    for t in range(16):
        u, hf = t >> 1, t & 1
        off = 8*hf + 256*(u >> 2)
        a(f"ds_read_b64_tr_b16 v[{VF+4*t}:{VF+4*t+1}], v{21+(u&3)} offset:{off}")
        a(f"ds_read_b64_tr_b16 v[{VF+4*t+2}:{VF+4*t+3}], v{25+(u&3)} offset:{off+4096}")
        if t == 7:
            pass
    ACC = 32
    for u in range(8):
        rem = 32 - 4*(u+1)
        a(f"s_waitcnt lgkmcnt({min(rem,15)})")
        d = ACC + 8*(u & 3)
        a(f"v_mfma_f32_16x16x32_bf16 v[{d}:{d+3}], v[{VF+8*u}:{VF+8*u+3}], v[8:11], 0")
        a(f"v_mfma_f32_16x16x32_bf16 v[{d+4}:{d+7}], v[{VF+8*u+4}:{VF+8*u+7}], v[8:11], 0")
        if u & 3 == 3:
            a("s_nop 7")
            for w in range(4):
                uu = u - 3 + w
                s = ACC + 8*w
                o = VF + 8*uu
                for k in range(4):
                    a(f"v_cvt_pk_bf16_f32 v{o+k}, v{s+2*k}, v{s+2*k+1}")
                a(f"buffer_store_dwordx4 v[{o}:{o+3}], v5, s[16:19], 0 offen offset:{64*uu} {st}")
    a("L_end:")
    a("s_endpgm")
    return wrap(a.text(), 512, 256, 49152, 128, 64)

if __name__ == "__main__":
    open("v1.s", "w").write(gen())
```
